```python
import torch

def _softmax(x, axis=-1):
    return torch.softmax(x, dim=axis)
def _gelu(x):
    return torch.nn.functional.gelu(x, approximate="tanh")
def _silu(x):
    return torch.nn.functional.silu(x)
def _sigmoid(x):
    return torch.sigmoid(x)
def _layernorm(x, axis=-1, eps=1e-5):
    m = x.mean(dim=axis, keepdim=True)
    v = x.var(dim=axis, keepdim=True, unbiased=False)
    return (x - m) / torch.sqrt(v + eps)
def _scatter_add(tgt, idx, src, axis=0):
    return tgt.clone().index_add_(axis, idx, src)
def _segment_sum(src, seg, n):
    out = torch.zeros((n,) + src.shape[1:], dtype=src.dtype)
    return out.index_add_(0, seg, src)
def _pad(x, pw):
    flat = tuple(v for pair in reversed(pw) for v in pair)
    return torch.nn.functional.pad(x, flat)

kernel_name = 'parallel_sum__spectral_gfnet__glu_gated_geglu__prompt'

def setup_inputs():

    _w = (lambda a: (lambda t: t.to(torch.bfloat16) if t.is_floating_point() else t)(torch.as_tensor(a)))
    def _A_setup():
        B, S, D = 1, 2048, 512
        Df = D // 2 + 1
        return {
            "x": _w((lambda *s: torch.randn(*s, dtype=torch.bfloat16) * 0.05)(B, S, D)),
            "w_r": _w((lambda *s: torch.randn(*s, dtype=torch.bfloat16) * 0.8)(S, Df) * 0.02),
            "w_i": _w((lambda *s: torch.randn(*s, dtype=torch.bfloat16) * 0.8)(S, Df) * 0.02),
        }
    _A_in = _A_setup()

    def _B_setup():
        B, S, Dm, Df = 1, 2048, 512, 1792
        return {
            "x": _w((lambda *s: torch.randn(*s, dtype=torch.bfloat16) * 0.05)(B, S, Dm)),
            "w_gate": _w((lambda *s: torch.randn(*s, dtype=torch.bfloat16) * 0.4)(Dm, Df) * (Dm ** -0.5)),
            "w_up": _w((lambda *s: torch.randn(*s, dtype=torch.bfloat16) * 0.4)(Dm, Df) * (Dm ** -0.5)),
            "w_down": _w((lambda *s: torch.randn(*s, dtype=torch.bfloat16) * 0.4)(Df, Dm) * (Df ** -0.5)),
        }
    _B_in = _B_setup()

    return {
        "A_x": _A_in["x"],
        "A_w_r": _A_in["w_r"],
        "A_w_i": _A_in["w_i"],
        "B_x": _B_in["x"],
        "B_w_gate": _B_in["w_gate"],
        "B_w_up": _B_in["w_up"],
        "B_w_down": _B_in["w_down"],
    }

def reference(A_x, A_w_r, A_w_i, B_x, B_w_gate, B_w_up, B_w_down):
    def _A_ref(x, w_r, w_i):
        B, S, D = x.shape
        X = (lambda x, axes=(-2,-1): torch.fft.rfft2(x.float(), dim=axes))(x, axes=(-2, -1))
        W = w_r + 1j * w_i
        X = X * W
        y = (lambda x, s, axes=(-2,-1): torch.fft.irfft2(x, s=s, dim=axes).to(torch.bfloat16))(X, (S, D), axes=(-2, -1))
        return y

    def _B_ref(x, w_gate, w_up, w_down):
        g = torch.einsum("bsd,df->bsf", x, w_gate)
        u = torch.einsum("bsd,df->bsf", x, w_up)
        h = _gelu(g) * u
        return torch.einsum("bsf,fd->bsd", h, w_down)

    x = A_x
    xn = _layernorm(x, axis=-1)
    return x + _A_ref(xn, A_w_r, A_w_i) + _B_ref(xn, B_w_gate, B_w_up, B_w_down)
```

```python
import re

class Asm:
    def __init__(self):
        self.lines = []
    def __call__(self, s):
        for ln in s.split("\n"):
            ln = ln.strip()
            if ln:
                self.lines.append("    " + ln)
    def label(self, n):
        self.lines.append(n + ":")
    def comment(self, s):
        self.lines.append("    ; " + s)
    def raw(self, s):
        self.lines.append(s)
    def nop(self, n):
        while n > 0:
            k = min(n, 16)
            self(f"s_nop {k-1}")
            n -= k
    def text(self):
        return "\n".join(self.lines) + "\n"

def vr(base, n=1):
    return f"v{base}" if n == 1 else f"v[{base}:{base+n-1}]"
def ar(base, n=1):
    return f"a{base}" if n == 1 else f"a[{base}:{base+n-1}]"
def sr(base, n=1):
    return f"s{base}" if n == 1 else f"s[{base}:{base+n-1}]"

class Alloc:
    def __init__(self, start, limit):
        self.next = start; self.limit = limit; self.names = {}
    def __call__(self, n=1, align=None, name=None):
        if align is None:
            align = 1 if n == 1 else (2 if n == 2 else 4 if n % 4 == 0 else 2)
        b = (self.next + align - 1) // align * align
        self.next = b + n
        assert self.next <= self.limit, f"out of registers: {name} {self.next} > {self.limit}"
        if name: self.names[name] = (b, n)
        return b

_REG = re.compile(r"\b([vas])(\d+)\b|\b([vas])\[(\d+):(\d+)\]|\b(vcc|exec|m0|scc)\b")
def _regs(op):
    out = []
    for m in _REG.finditer(op):
        if m.group(1):
            out.append((m.group(1), int(m.group(2))))
        elif m.group(3):
            for r in range(int(m.group(4)), int(m.group(5)) + 1):
                out.append((m.group(3), r))
        else:
            out.append((m.group(6), 0))
    return out

TRANS = ("v_exp_f32", "v_log_f32", "v_rcp_f32", "v_rsq_f32", "v_sqrt_f32", "v_sin_f32", "v_cos_f32")

class Ins:
    def __init__(self, text, idx):
        self.text = text; self.idx = idx
        t = text.split(";")[0].strip()
        parts = t.split(None, 1)
        self.op = parts[0]
        rest = parts[1] if len(parts) > 1 else ""
        ops = []; depth = 0; cur = ""
        for ch in rest:
            if ch == "[": depth += 1
            if ch == "]": depth -= 1
            if ch == "," and depth == 0:
                ops.append(cur.strip()); cur = ""
            else:
                cur += ch
        if cur.strip(): ops.append(cur.strip())
        self.ops = ops
        op = self.op
        self.is_mfma = op.startswith("v_mfma")
        self.is_valu = op.startswith("v_") and not self.is_mfma
        self.is_trans = any(op.startswith(x) for x in TRANS)
        self.is_dot = op.startswith("v_dot")
        self.is_salu = op.startswith("s_")
        self.is_ds = op.startswith("ds_")
        self.is_vmem = op.startswith("buffer_") or op.startswith("global_")
        self.is_lds_dma = self.is_vmem and (" lds" in rest + " " and rest.strip().endswith("lds") or "load_lds" in op)
        self.dst = []; self.src = []
        R = [_regs(o) for o in ops]
        if op == "s_nop":
            self.ws = int(ops[0], 0) + 1
        else:
            self.ws = 1
        if self.is_mfma:
            self.dst = R[0]; self.srcA = R[1]; self.srcB = R[2]; self.srcC = R[3] if len(R) > 3 else []
            self.src = self.srcA + self.srcB + self.srcC
            self.passes = 4 if "16x16x32" in op else 8
        elif self.is_valu:
            if op.startswith("v_cmp"):
                self.dst = R[0]; self.src = sum(R[1:], [])
                if op.startswith("v_cmpx"): self.dst = self.dst + [("exec", 0)]
            elif op.startswith("v_readfirstlane") or op.startswith("v_readlane"):
                self.dst = R[0]; self.src = sum(R[1:], [])
            elif op.startswith("v_permlane"):
                self.dst = R[0] + R[1]; self.src = R[0] + R[1]
            elif op.startswith(("v_add_co", "v_sub_co", "v_addc_co", "v_subb_co")):
                self.dst = R[0] + R[1]; self.src = sum(R[2:], [])
            else:
                self.dst = R[0]; self.src = sum(R[1:], [])
                if op.startswith(("v_fmac", "v_dot2c", "v_mac", "v_pk_fmac")): self.src = self.src + R[0]
                if op.startswith("v_cndmask") and len(R) == 3: self.src = self.src + [("vcc", 0)]
        elif self.is_ds:
            if op.startswith("ds_read") or op.startswith("ds_bpermute") or op.startswith("ds_swizzle"):
                self.dst = R[0]; self.src = sum(R[1:], [])
            else:
                self.src = sum(R, [])
        elif self.is_vmem:
            if ("load" in op and not self.is_lds_dma):
                self.dst = R[0]; self.src = sum(R[1:], [])
            else:
                self.src = sum(R, [])
                if self.is_lds_dma: self.src = self.src + [("m0", 0)]
            self.is_store = ("store" in op or "atomic" in op)
            self.wide_store = self.is_store and ("x4" in op or "x3" in op)
            if self.is_store:
                self.data = R[0] if op.startswith("buffer_") else (R[1] if len(R) > 1 else [])
        elif self.is_salu:
            if op.startswith(("s_cmp", "s_waitcnt", "s_barrier", "s_nop", "s_branch", "s_cbranch", "s_endpgm", "s_sleep", "s_setprio")):
                self.src = sum(R, [])
            else:
                self.dst = R[0] if R else []; self.src = sum(R[1:], [])

def check_hazards(lines, name=""):
    ins = []
    for i, l in enumerate(lines):
        t = l.split(";")[0].strip()
        if not t or t.endswith(":") or t.startswith("."): continue
        ins.append(Ins(t, i))
    probs = []
    n = len(ins)
    def overl(a, b): return bool(set(a) & set(b))
    for j in range(n):
        c = ins[j]
        dist = 0
        for i in range(j - 1, max(-1, j - 40), -1):
            p = ins[i]
            need = 0; why = ""
            if p.op.startswith(("s_branch", "s_endpgm")):
                break
            vdst = [r for r in p.dst if r[0] in "va"]
            sdst = [r for r in p.dst if r[0] == "s" or r[0] == "vcc"]
            if p.is_valu:
                if c.is_mfma and overl(vdst, c.src): need, why = 2, "VALU->MFMA src"
                if c.op.startswith("v_permlane") and overl(vdst, c.src): need, why = max(need, 2), "VALU->permlane"
                if c.op.startswith(("v_readfirstlane", "v_readlane")) and overl(vdst, c.src): need, why = max(need, 1), "VALU->readlane"
                if p.is_trans and c.is_valu and not c.is_trans and overl(vdst, c.src): need, why = max(need, 1), "trans->VALU"
                if p.is_trans and (c.is_mfma or c.is_ds or c.is_vmem) and overl(vdst, c.src): need, why = max(need, 1), "trans->use"
                if sdst and c.is_vmem and overl(sdst, c.src): need, why = max(need, 5), "VALU sgpr->VMEM"
                if sdst and c.is_valu and overl(sdst, c.src): need, why = max(need, 2), "VALU sgpr->VALU"
                if sdst and c.is_salu and overl(sdst, c.src): need, why = max(need, 1), "VALU sgpr->SALU(pad)"
                if "dpp" in c.text and overl(vdst, c.src): need, why = max(need, 2), "VALU->DPP"
                if p.is_dot and not c.is_dot and (c.is_valu or c.is_mfma or c.is_ds or c.is_vmem) and (overl(vdst, c.src) or overl(vdst, c.dst)): need, why = max(need, 3), "DOT->other"
                if p.is_dot and c.is_dot and p.op == c.op:
                    ab = sum([_regs(o) for o in c.ops[1:3]], [])
                    if overl(vdst, ab): need, why = max(need, 3), "DOT->DOT AB"
                if ("exec", 0) in p.dst and c.is_mfma: need, why = max(need, 4), "VALU exec->MFMA"
            if p.is_mfma:
                P = p.passes
                if c.is_mfma:
                    if overl(p.dst, c.srcA + c.srcB): need, why = {4: 8, 8: 12}[P], "MFMA D->A/B"
                    elif overl(p.dst, c.srcC):
                        if c.srcC == p.dst and c.passes == P: need = 0
                        else: need, why = {4: 6, 8: 10}[P], "MFMA D->C partial"
                    elif overl(p.dst, c.dst): need, why = {4: 6, 8: 10}[P], "MFMA WAW"
                elif (c.is_valu or c.is_ds or c.is_vmem):
                    if overl(p.dst, c.src) or overl(p.dst, c.dst): need, why = {4: 8, 8: 12}[P], "MFMA D->VALU/MEM"
                    if c.is_valu and overl(p.srcC, c.dst) and not overl(p.dst, c.dst): need, why = max(need, {4: 3, 8: 7}[P]), "MFMA C WAR"
            if p.is_salu and ("m0", 0) in p.dst and c.is_vmem and c.is_lds_dma: need, why = 1, "m0->DMA"
            if p.is_vmem and getattr(p, "wide_store", False) and (c.is_valu or c.is_mfma) and overl(p.data, c.dst): need, why = 2, "wide store WAR"
            if p.is_vmem and getattr(p, "wide_store", False) and (c.is_ds or c.is_vmem) and overl(p.data, c.dst): need, why = max(need, 1), "wide store WAR(mem)"
            if need > dist:
                probs.append(f"{name}: line {c.idx}: '{c.text}' needs {need} ws after line {p.idx} '{p.text}' ({why}), has {dist}")
            dist += p.ws
            if dist >= 20: break
    return probs
```

```python
import sys, math, struct
from asmlib import *

NAME = "parallel_sum__spectral_gfnet__glu_gated_geglu__prompt"

H_OFF  = 0x000000
W2_OFF = 0x700000
X1_OFF = 0x940000
WT_OFF = 0xB40000
YT_OFF = 0xD40000
WS_USED = 0xF40000

def f32bits(x):
    return struct.unpack("<I", struct.pack("<f", x))[0]
def hexf(x):
    return "0x%08x" % f32bits(x)

def srd(a, base, size):
    a(f"s_mov_b32 s{base+2}, {size}")
    a(f"s_mov_b32 s{base+3}, 0x20000")

def descriptor(name, vgpr, sgpr, accum):
    return f"""
.section .rodata,"a"
.p2align 6
.amdhsa_kernel {name}
  .amdhsa_next_free_vgpr {vgpr}
  .amdhsa_next_free_sgpr {sgpr}
  .amdhsa_accum_offset {accum}
  .amdhsa_group_segment_fixed_size 0
  .amdhsa_kernarg_size 80
  .amdhsa_user_sgpr_count 2
  .amdhsa_user_sgpr_kernarg_segment_ptr 1
  .amdhsa_system_sgpr_workgroup_id_x 1
.end_amdhsa_kernel
.text
"""

def header(a, name):
    a.raw(f".globl {name}")
    a.raw(".p2align 8")
    a.raw(f".type {name},@function")
    a.raw(f"{name}:")

def bf16_round(a, v, tmp):
    a(f"v_cvt_pk_bf16_f32 v{tmp}, v{v}, v{v}")
    a(f"v_lshlrev_b32 v{v}, 16, v{tmp}")

K1_STAT = 0
K1_CS = K1_STAT + 4096
K1_RR = K1_CS + 1024
K1_F = K1_RR + 1024
K1_RING = K1_F + 32768
K1_STAGE = 24576
K1_NS = 5
K1_LDS = K1_RING + K1_NS * K1_STAGE

def gen_k1(name):
    a = Asm()
    header(a, name)
    P = "K1_"
    sX, sWG, sWU, sWD, sWR, sWI, sWS = 4, 8, 12, 16, 20, 24, 28
    sA, sCT, sW, sWRr, sWC = 32, 33, 34, 35, 36
    sT, sOX, sOW, sCur, sNext, sPrev, sM0 = 37, 38, 39, 40, 41, 42, 43
    sOnes = 44
    sT0, sT1, sT2, sT3, sT4, sT5 = 45, 46, 47, 48, 49, 50
    sPI = [51, 52, 53, 54]
    sC0, sC1 = 55, 56
    V = Alloc(1, 256)
    vL, vL15, vG = V(), V(), V()
    vL16 = V()
    vXoff, vWoff = V(), V()
    vAb = [V() for _ in range(4)]
    vA = [V() for _ in range(4)]
    vXa = V(); vFa = V()
    vStat = [V(), V()]
    vCG, vCU = V(), V()
    vT = [V() for _ in range(16)]
    XF = [[V(4), V(4)], [V(4), V(4)]]
    WF = [V(4) for _ in range(8)]
    ACC = [[V(4), V(4)] for _ in range(8)]
    vS = [V(4) for _ in range(4)]
    vU = [V(4) for _ in range(8)]

    a(f"s_cmp_ge_u32 s2, 256")
    a(f"s_cbranch_scc1 {P}END")
    a(f"s_load_dwordx2 s[{sX}:{sX+1}], s[0:1], 0")
    a(f"s_load_dwordx2 s[{sWR}:{sWR+1}], s[0:1], 8")
    a(f"s_load_dwordx2 s[{sWI}:{sWI+1}], s[0:1], 16")
    a(f"s_load_dwordx2 s[{sWG}:{sWG+1}], s[0:1], 32")
    a(f"s_load_dwordx2 s[{sWU}:{sWU+1}], s[0:1], 40")
    a(f"s_load_dwordx2 s[{sWD}:{sWD+1}], s[0:1], 48")
    a(f"s_load_dwordx2 s[{sWS}:{sWS+1}], s[0:1], 72")
    a(f"s_and_b32 s{sT0}, s2, 7")
    a(f"s_lshr_b32 s{sT1}, s2, 3")
    a(f"s_and_b32 s{sA}, s{sT0}, 1")
    a(f"s_lshl_b32 s{sA}, s{sA}, 3")
    a(f"s_and_b32 s{sT2}, s{sT1}, 7")
    a(f"s_or_b32 s{sA}, s{sA}, s{sT2}")
    a(f"s_lshr_b32 s{sCT}, s{sT0}, 1")
    a(f"s_lshl_b32 s{sCT}, s{sCT}, 2")
    a(f"s_lshr_b32 s{sT2}, s{sT1}, 3")
    a(f"s_or_b32 s{sCT}, s{sCT}, s{sT2}")
    a(f"v_lshrrev_b32 v{vT[0]}, 6, v0")
    a(f"v_and_b32 v{vL}, 63, v0")
    a(f"v_and_b32 v{vL15}, 15, v0")
    a(f"v_readfirstlane_b32 s{sW}, v{vT[0]}")
    a(f"v_lshrrev_b32 v{vG}, 4, v{vL}")
    a(f"v_lshlrev_b32 v{vL16}, 4, v{vL}")
    a(f"s_mov_b32 s{sOnes}, 0x3f803f80")
    a.nop(1)
    a(f"s_and_b32 s{sWRr}, s{sW}, 3")
    a(f"s_lshr_b32 s{sWC}, s{sW}, 2")
    srd(a, sX, 2048*512*2); srd(a, sWG, 512*1792*2); srd(a, sWU, 512*1792*2); srd(a, sWD, 512*1792*2)
    srd(a, sWR, 2048*257*2); srd(a, sWI, 2048*257*2); srd(a, sWS, WS_USED)

    a(f"s_lshl_b32 s{sT0}, s{sWRr}, 4")
    a(f"v_add_u32 v{vT[0]}, s{sT0}, v{vL15}")
    a(f"v_lshlrev_b32 v{vT[0]}, 15, v{vT[0]}")
    a(f"s_lshl_b32 s{sT1}, s{sA}, 1")
    a(f"s_add_u32 s{sT1}, s{sT1}, s{sWC}")
    a(f"s_lshl_b32 s{sT1}, s{sT1}, 10")
    a(f"v_lshlrev_b32 v{vT[1]}, 4, v{vG}")
    a(f"v_add3_u32 v{vXoff}, v{vT[0]}, s{sT1}, v{vT[1]}")
    a(f"s_lshr_b32 s{sT0}, s{sW}, 1")
    a(f"s_and_b32 s{sT0}, s{sT0}, 1")
    a(f"s_lshl_b32 s{sT0}, s{sT0}, 2")
    a(f"v_or_b32 v{vT[0]}, s{sT0}, v{vG}")
    a(f"v_lshrrev_b32 v{vT[1]}, 1, v{vL15}")
    a(f"v_xor_b32 v{vT[1]}, v{vT[1]}, v{vT[0]}")
    a(f"s_lshl_b32 s{sT0}, s{sW}, 2")
    a(f"v_add_u32 v{vT[2]}, s{sT0}, v{vG}")
    a(f"s_movk_i32 s{sT1}, 3584")
    a(f"v_mul_lo_u32 v{vT[2]}, v{vT[2]}, s{sT1}")
    a(f"v_lshlrev_b32 v{vT[3]}, 5, v{vT[1]}")
    a(f"v_and_b32 v{vT[4]}, 1, v{vL15}")
    a(f"v_lshlrev_b32 v{vT[4]}, 4, v{vT[4]}")
    a(f"s_mul_i32 s{sT0}, s{sCT}, 224")
    a(f"v_add3_u32 v{vT[2]}, v{vT[2]}, v{vT[3]}, v{vT[4]}")
    a(f"v_add_u32 v{vWoff}, s{sT0}, v{vT[2]}")
    a(f"v_cmp_eq_u32 vcc, 7, v{vT[1]}")
    a(f"v_mov_b32 v{vT[5]}, 0x7ff00000")
    a.nop(1)
    a(f"v_cndmask_b32 v{vWoff}, v{vWoff}, v{vT[5]}, vcc")

    vWTa = V()
    a(f"v_and_b32 v{vT[0]}, 31, v0")
    a(f"v_lshrrev_b32 v{vT[1]}, 5, v0")
    a(f"s_and_b32 s{sT0}, s2, 7")
    a(f"s_lshl_b32 s{sT0}, s{sT0}, 5")
    a(f"v_add_u32 v{vT[0]}, s{sT0}, v{vT[0]}")
    a(f"s_lshr_b32 s{sT1}, s2, 3")
    a(f"s_lshr_b32 s{sT2}, s{sT1}, 3")
    a(f"s_and_b32 s{sT3}, s{sT1}, 7")
    a(f"s_lshl_b32 s{sT4}, s{sT3}, 8")
    a(f"s_lshl_b32 s{sT5}, s{sT2}, 4")
    a(f"s_add_u32 s{sT4}, s{sT4}, s{sT5}")
    a(f"v_add_u32 v{vT[2]}, s{sT4}, v{vT[1]}")
    a(f"s_movk_i32 s{sT5}, 257")
    a(f"v_mul_lo_u32 v{vT[2]}, v{vT[2]}, s{sT5}")
    a(f"v_cmp_eq_u32 vcc, 0, v{vT[0]}")
    a(f"v_mov_b32 v{vT[3]}, 256")
    a.nop(1)
    a(f"v_cndmask_b32 v{vT[3]}, v{vT[0]}, v{vT[3]}, vcc")
    a(f"v_add_lshl_u32 v{vT[2]}, v{vT[2]}, v{vT[3]}, 1")
    a(f"s_lshl_b32 s{sT2}, s{sT2}, 7")
    a(f"s_lshl_b32 s{sT3}, s{sT3}, 4")
    a(f"s_add_u32 s{sT2}, s{sT2}, s{sT3}")
    a(f"v_add_u32 v{vT[1]}, s{sT2}, v{vT[1]}")
    a(f"v_lshlrev_b32 v{vT[1]}, 4, v{vT[1]}")
    a(f"v_lshlrev_b32 v{vT[0]}, 13, v{vT[0]}")
    a(f"v_add_u32 v{vWTa}, v{vT[0]}, v{vT[1]}")
    a(f"s_mov_b32 s{sT0}, 32896")
    a(f"s_mov_b32 s{sT1}, {2*32896}")
    a(f"s_mov_b32 s{sT2}, {3*32896}")
    a("s_waitcnt lgkmcnt(0)")
    so = ["0", f"s{sT0}", f"s{sT1}", f"s{sT2}"]
    for r in range(4):
        a(f"buffer_load_ushort v{vU[0]+r}, v{vT[2]}, s[{sWR}:{sWR+3}], {so[r]} offen")
        a(f"buffer_load_ushort v{vU[1]+r}, v{vT[2]}, s[{sWI}:{sWI+3}], {so[r]} offen")
    vW2a = V()
    a(f"v_mov_b32 v{vW2a}, 0")
    a(f"s_cmp_eq_u32 s{sW}, 7")
    a(f"s_cbranch_scc1 {P}NOWD")
    a(f"s_mul_i32 s{sT0}, s2, 7")
    a(f"s_add_u32 s{sT0}, s{sT0}, s{sW}")
    a(f"s_lshr_b32 s{sT1}, s{sT0}, 5")
    a(f"s_and_b32 s{sT2}, s{sT0}, 31")
    a(f"s_lshl_b32 s{sT3}, s{sT1}, 15")
    a(f"s_lshl_b32 s{sT4}, s{sT2}, 5")
    a(f"s_add_u32 s{sT3}, s{sT3}, s{sT4}")
    a(f"v_lshlrev_b32 v{vT[4]}, 12, v{vG}")
    a(f"v_lshlrev_b32 v{vT[5]}, 1, v{vL15}")
    a(f"v_add3_u32 v{vT[4]}, v{vT[4]}, v{vT[5]}, s{sT3}")
    a(f"s_movk_i32 s{sT5}, 16384")
    for j in range(4):
        a(f"buffer_load_ushort v{vU[2]+j}, v{vT[4]}, s[{sWD}:{sWD+3}], 0 offen offset:{j*1024}")
    for j in range(4):
        a(f"buffer_load_ushort v{vU[3]+j}, v{vT[4]}, s[{sWD}:{sWD+3}], s{sT5} offen offset:{j*1024}")
    a(f"s_lshr_b32 s{sT3}, s{sT2}, 2")
    a(f"s_mul_i32 s{sT3}, s{sT3}, 72")
    a(f"s_add_u32 s{sT3}, s{sT3}, s{sT1}")
    a(f"s_lshl_b32 s{sT3}, s{sT3}, 2")
    a(f"s_and_b32 s{sT2}, s{sT2}, 3")
    a(f"s_add_u32 s{sT3}, s{sT3}, s{sT2}")
    a(f"s_lshl_b32 s{sT3}, s{sT3}, 10")
    a(f"v_add_u32 v{vW2a}, s{sT3}, v{vL16}")
    a.label(f"{P}NOWD")

    a(f"s_lshl_b32 s{sM0}, s{sW}, 10")
    for st in range(4):
        base = K1_RING + st * K1_STAGE
        a(f"s_add_u32 m0, s{sM0}, {base}")
        a(f"s_movk_i32 s{sOX}, {st*64}")
        a(f"buffer_load_dwordx4 v{vXoff}, s[{sX}:{sX+3}], s{sOX} offen lds")
        a(f"s_add_u32 m0, s{sM0}, {base+8192}")
        a(f"s_mov_b32 s{sOW}, {st*114688}")
        a(f"buffer_load_dwordx4 v{vWoff}, s[{sWG}:{sWG+3}], s{sOW} offen lds")
        a(f"s_add_u32 m0, s{sM0}, {base+16384}")
        a.nop(1)
        a(f"buffer_load_dwordx4 v{vWoff}, s[{sWU}:{sWU+3}], s{sOW} offen lds")

    def ceff_cf(dst, vc, tmp):
        a(f"v_cmp_eq_u32 vcc, 0, v{vc}")
        a(f"v_mov_b32 v{tmp}, 256")
        a.nop(1)
        a(f"v_cndmask_b32 v{tmp}, v{vc}, v{tmp}, vcc")
        a(f"v_cvt_f32_u32 v{dst}, v{tmp}")
        a(f"v_mul_f32 v{dst}, {hexf(1.0/512)}, v{dst}")
    vCF = V()
    a(f"s_lshl_b32 s{sT0}, s{sCT}, 4")
    a(f"v_add_u32 v{vT[0]}, s{sT0}, v{vL15}")
    ceff_cf(vCF, vT[0], vT[1])
    for tt in range(2):
        a(f"s_lshl_b32 s{sT0}, s{sW}, 6")
        a(f"s_add_u32 s{sT0}, s{sT0}, {32*tt}")
        a(f"v_lshlrev_b32 v{vT[0]}, 3, v{vG}")
        a(f"v_add_u32 v{vT[0]}, s{sT0}, v{vT[0]}")
        a(f"v_cvt_f32_u32 v{vT[0]}, v{vT[0]}")
        a(f"v_mul_f32 v{vT[0]}, v{vT[0]}, v{vCF}")
        a(f"v_fract_f32 v{vT[0]}, v{vT[0]}")
        for j in range(1, 8):
            a(f"v_add_f32 v{vT[j]}, v{vT[j-1]}, v{vCF}")
        for j in range(8):
            a(f"v_cos_f32 v{vT[8+j]}, v{vT[j]}")
        for j in range(8):
            a(f"v_sin_f32 v{vT[j]}, -v{vT[j]}")
        a.nop(1)
        for j in range(4):
            a(f"v_cvt_pk_bf16_f32 v{vS[0]+j}, v{vT[8+2*j]}, v{vT[8+2*j+1]}")
        for j in range(4):
            a(f"v_cvt_pk_bf16_f32 v{vS[1]+j}, v{vT[2*j]}, v{vT[2*j+1]}")
        a(f"s_lshl_b32 s{sT0}, s{sW}, 12")
        a(f"v_add_u32 v{vT[0]}, s{sT0}, v{vL16}")
        a(f"ds_write_b128 v{vT[0]}, v[{vS[0]}:{vS[0]+3}] offset:{K1_F + tt*2048}")
        a(f"ds_write_b128 v{vT[0]}, v[{vS[1]}:{vS[1]+3}] offset:{K1_F + tt*2048 + 1024}")
        a.nop(2)

    a(f"s_cmp_eq_u32 s{sW}, 7")
    a(f"s_cbranch_scc0 {P}NOG")
    for e in range(2):
        a(f"s_lshl_b32 s{sT0}, s2, 1")
        a(f"s_add_u32 s{sT0}, s{sT0}, {e}")
        a(f"s_lshr_b32 s{sT1}, s{sT0}, 5")
        a(f"s_and_b32 s{sT2}, s{sT0}, 31")
        a(f"s_lshl_b32 s{sT3}, s{sT2}, 4")
        a(f"v_add_u32 v{vT[0]}, s{sT3}, v{vL15}")
        a(f"v_cvt_f32_u32 v{vT[0]}, v{vT[0]}")
        a(f"v_mul_f32 v{vT[0]}, {hexf(1.0/512)}, v{vT[0]}")
        a(f"s_lshl_b32 s{sT3}, s{sT1}, 4")
        a(f"v_lshlrev_b32 v{vT[1]}, 2, v{vG}")
        a(f"v_add_u32 v{vT[1]}, s{sT3}, v{vT[1]}")
        a(f"v_cmp_eq_u32 vcc, 0, v{vT[1]}")
        a(f"v_mov_b32 v{vT[2]}, 256")
        a.nop(1)
        a(f"v_cndmask_b32 v{vT[2]}, v{vT[1]}, v{vT[2]}, vcc")
        a(f"v_cvt_f32_u32 v{vT[4]}, v{vT[2]}")
        for j in range(1, 4):
            a(f"v_add_u32 v{vT[2]}, {j}, v{vT[1]}")
            a(f"v_cvt_f32_u32 v{vT[4+j]}, v{vT[2]}")
        for j in range(4):
            a(f"v_mul_f32 v{vT[4+j]}, v{vT[4+j]}, v{vT[0]}")
            a(f"v_fract_f32 v{vT[4+j]}, v{vT[4+j]}")
        for j in range(4):
            a(f"v_cos_f32 v{vT[8+j]}, v{vT[4+j]}")
        for j in range(4):
            a(f"v_sin_f32 v{vT[12+j]}, -v{vT[4+j]}")
        a.nop(1)
        for j in range(4):
            a(f"v_cvt_pk_bf16_f32 v{vS[2]+j}, v{vT[8+2*j]}, v{vT[8+2*j+1]}")
        a(f"s_lshr_b32 s{sT3}, s{sT2}, 2")
        a(f"s_mul_i32 s{sT3}, s{sT3}, 72")
        a(f"s_add_u32 s{sT3}, s{sT3}, s{sT1}")
        a(f"s_add_u32 s{sT3}, s{sT3}, 56")
        a(f"s_lshl_b32 s{sT3}, s{sT3}, 2")
        a(f"s_and_b32 s{sT2}, s{sT2}, 3")
        a(f"s_add_u32 s{sT3}, s{sT3}, s{sT2}")
        a(f"s_lshl_b32 s{sT3}, s{sT3}, 10")
        a(f"s_add_u32 s{sT3}, s{sT3}, {W2_OFF}")
        a(f"buffer_store_dwordx4 v[{vS[2]}:{vS[2]+3}], v{vL16}, s[{sWS}:{sWS+3}], s{sT3} offen")
        a.nop(2)
    a.label(f"{P}NOG")

    a(f"s_cmp_eq_u32 s{sWC}, 0")
    a(f"s_cbranch_scc0 {P}PI1")
    for p in range(4):
        a(f"s_add_u32 s{sPI[p]}, s{sWRr}, {p}")
        a(f"s_and_b32 s{sPI[p]}, s{sPI[p]}, 3")
    a(f"s_branch {P}PI2")
    a.label(f"{P}PI1")
    for p in range(3):
        a(f"s_add_u32 s{sPI[p]}, s{sWRr}, {p}")
        a(f"s_cmp_ge_u32 s{sPI[p]}, 3")
        a(f"s_cselect_b32 s{sT0}, 3, 0")
        a(f"s_sub_u32 s{sPI[p]}, s{sPI[p]}, s{sT0}")
        a(f"s_cmp_ge_u32 s{sPI[p]}, 3")
        a(f"s_cselect_b32 s{sT0}, 3, 0")
        a(f"s_sub_u32 s{sPI[p]}, s{sPI[p]}, s{sT0}")
        a(f"s_add_u32 s{sPI[p]}, s{sPI[p]}, 4")
    a(f"s_mov_b32 s{sPI[3]}, 0")
    a.label(f"{P}PI2")
    a(f"v_lshrrev_b32 v{vT[0]}, 2, v{vL15}")
    a(f"v_and_b32 v{vT[1]}, 3, v{vL15}")
    a(f"v_and_b32 v{vT[2]}, 1, v{vG}")
    a(f"v_lshl_or_b32 v{vT[2]}, v{vT[2]}, 2, v{vT[0]}")
    a(f"v_lshl_add_u32 v{vT[3]}, v{vG}, 3, v{vT[0]}")
    a(f"v_lshlrev_b32 v{vT[3]}, 8, v{vT[3]}")
    a(f"v_lshl_add_u32 v{vT[3]}, v{vT[1]}, 3, v{vT[3]}")
    a(f"v_add_u32 v{vT[3]}, 8192, v{vT[3]}")
    for p in range(4):
        a(f"v_xor_b32 v{vT[4]}, s{sPI[p]}, v{vT[2]}")
        a(f"v_lshl_add_u32 v{vAb[p]}, v{vT[4]}, 5, v{vT[3]}")
    vXb = V()
    a(f"s_lshl_b32 s{sT0}, s{sWRr}, 11")
    a(f"v_add_u32 v{vXb}, s{sT0}, v{vL16}")
    a(f"v_mov_b32 v{vFa}, v{vL16}")
    for m in range(8):
        for rb in range(2):
            for r in range(4):
                a(f"v_mov_b32 v{ACC[m][rb]+r}, 0")
    for x in (vStat[0], vStat[1], vCG, vCU):
        a(f"v_mov_b32 v{x}, 0")

    a("s_waitcnt vmcnt(12)")
    for r in range(4):
        a(f"v_lshl_or_b32 v{vS[0]+r}, v{vU[1]+r}, 16, v{vU[0]+r}")
    a(f"s_mov_b32 s{sT0}, {WT_OFF}")
    a(f"buffer_store_dwordx4 v[{vS[0]}:{vS[0]+3}], v{vWTa}, s[{sWS}:{sWS+3}], s{sT0} offen")
    a(f"s_cmp_eq_u32 s{sW}, 7")
    a(f"s_cbranch_scc1 {P}NOWD2")
    a(f"v_lshl_or_b32 v{vS[1]+0}, v{vU[2]+1}, 16, v{vU[2]+0}")
    a(f"v_lshl_or_b32 v{vS[1]+1}, v{vU[2]+3}, 16, v{vU[2]+2}")
    a(f"v_lshl_or_b32 v{vS[1]+2}, v{vU[3]+1}, 16, v{vU[3]+0}")
    a(f"v_lshl_or_b32 v{vS[1]+3}, v{vU[3]+3}, 16, v{vU[3]+2}")
    a(f"s_mov_b32 s{sT0}, {W2_OFF}")
    a(f"buffer_store_dwordx4 v[{vS[1]}:{vS[1]+3}], v{vW2a}, s[{sWS}:{sWS+3}], s{sT0} offen")
    a.label(f"{P}NOWD2")

    a("s_waitcnt vmcnt(9) lgkmcnt(0)")
    a("s_barrier")
    a(f"s_mov_b32 s{sT}, 0")
    a(f"s_mov_b32 s{sCur}, {K1_RING}")
    a(f"s_mov_b32 s{sNext}, {K1_RING + K1_STAGE}")
    a(f"s_mov_b32 s{sPrev}, {K1_RING + 4*K1_STAGE}")
    a(f"s_movk_i32 s{sOX}, {4*64}")
    a(f"s_mov_b32 s{sOW}, {4*114688}")
    a(f"s_cmp_eq_u32 s{sWC}, 0")
    a(f"s_cbranch_scc0 {P}WC1")

    def read_frag(wc, m, base_sgpr, q, par_unused=None, foff=0):
        if wc == 1 and m >= 6:
            a(f"ds_read_b128 v[{WF[m]}:{WF[m]+3}], v{vFa} offset:{K1_F + foff + (m-6)*1024}")
            q.append(("F", m)); return
        p = m // 2; up = m % 2
        if up == 0:
            a(f"v_add_u32 v{vA[p]}, s{base_sgpr}, v{vAb[p]}")
        off = 8192 * up
        a(f"ds_read_b64_tr_b16 v[{WF[m]}:{WF[m]+1}], v{vA[p]} offset:{off}")
        a(f"ds_read_b64_tr_b16 v[{WF[m]+2}:{WF[m]+3}], v{vA[p]} offset:{off+1024}")
        q.append(("F", m)); q.append(("F", m))
    def read_x(par, base_sgpr, q):
        a(f"v_add_u32 v{vXa}, s{base_sgpr}, v{vXb}")
        for rb in range(2):
            a(f"ds_read_b128 v[{XF[par][rb]}:{XF[par][rb]+3}], v{vXa} offset:{rb*1024}")
            q.append(("X", par))
    def wait_for(q, tags):
        last = -1
        for i, t in enumerate(q):
            if t in tags: last = i
        n = len(q) - 1 - last
        if last >= 0:
            assert n <= 15
            a(f"s_waitcnt lgkmcnt({n})")
            del q[:last+1]

    def main(wc):
        L = f"{P}L{wc}"
        q = []
        read_x(0, sCur, q)
        for m in range(4):
            read_frag(wc, m, sCur, q)
        a.label(f"{L}_LOOP")
        q_at_entry = list(q)
        for par in range(2):
            for m in range(8):
                if m < 4:
                    read_frag(wc, m + 4, sCur, q, foff=par*2048)
                else:
                    if m == 4:
                        a(f"s_cmp_lt_u32 s{sT}, 13")
                        a(f"s_cbranch_scc0 {L}_W0_{par}")
                        a("s_waitcnt vmcnt(6)")
                        a(f"s_branch {L}_W1_{par}")
                        a.label(f"{L}_W0_{par}")
                        a("s_waitcnt vmcnt(0)")
                        a.label(f"{L}_W1_{par}")
                        a("s_barrier")
                        a(f"s_cmp_lt_u32 s{sT}, 12")
                        a(f"s_cbranch_scc0 {L}_ND_{par}")
                        a(f"s_add_u32 m0, s{sPrev}, s{sM0}")
                        a(f"s_add_u32 s{sT0}, s{sPrev}, s{sM0}")
                        a(f"buffer_load_dwordx4 v{vXoff}, s[{sX}:{sX+3}], s{sOX} offen lds")
                        a(f"s_add_u32 m0, s{sT0}, 8192")
                        a(f"s_add_u32 s{sOX}, s{sOX}, 64")
                        a(f"buffer_load_dwordx4 v{vWoff}, s[{sWG}:{sWG+3}], s{sOW} offen lds")
                        a(f"s_add_u32 m0, s{sT0}, 16384")
                        a.nop(1)
                        a(f"buffer_load_dwordx4 v{vWoff}, s[{sWU}:{sWU+3}], s{sOW} offen lds")
                        a(f"s_add_u32 s{sOW}, s{sOW}, 114688")
                        a.label(f"{L}_ND_{par}")
                        read_x(1 - par, sNext, q)
                    read_frag(wc, m - 4, sNext, q)
                tags = [("F", m)] + ([("X", par)] if m == 0 else [])
                wait_for(q, tags)
                fr = f"v[{WF[m]}:{WF[m]+3}]"
                for rb in range(2):
                    xr = f"v[{XF[par][rb]}:{XF[par][rb]+3}]"
                    ac = f"v[{ACC[m][rb]}:{ACC[m][rb]+3}]"
                    if wc == 1 and m >= 6:
                        a(f"v_mfma_f32_16x16x32_bf16 {ac}, {xr}, {fr}, {ac}")
                    else:
                        a(f"v_mfma_f32_16x16x32_bf16 {ac}, {fr}, {xr}, {ac}")
                if m in (0, 1):
                    tgt = vCG if m == 0 else vCU
                    for r in range(4):
                        a(f"v_dot2c_f32_bf16 v{tgt}, s{sOnes}, v{WF[m]+r}")
                if m in (2, 3):
                    rb = m - 2
                    for r in range(4):
                        x = XF[par][rb] + r
                        if wc == 0:
                            a(f"v_dot2c_f32_bf16 v{vStat[rb]}, s{sOnes}, v{x}")
                        else:
                            a(f"v_dot2c_f32_bf16 v{vStat[rb]}, v{x}, v{x}")
            a(f"s_mov_b32 s{sPrev}, s{sCur}")
            a(f"s_mov_b32 s{sCur}, s{sNext}")
            a(f"s_add_u32 s{sNext}, s{sNext}, {K1_STAGE}")
            a(f"s_cmp_eq_u32 s{sNext}, {K1_RING + K1_NS*K1_STAGE}")
            a(f"s_cselect_b32 s{sNext}, {K1_RING}, s{sNext}")
            a(f"s_add_u32 s{sT}, s{sT}, 1")
        if wc == 1:
            a(f"v_add_u32 v{vFa}, 4096, v{vFa}")
        assert q == q_at_entry, (q, q_at_entry)
        a(f"s_cmp_lt_u32 s{sT}, 16")
        a(f"s_cbranch_scc1 {L}_LOOP")
        a("s_waitcnt lgkmcnt(0)")

    main(0)
    a(f"s_branch {P}EPI")
    a.label(f"{P}WC1")
    main(1)
    a.label(f"{P}EPI")

    a(f"s_lshl_b32 s{sT0}, s{sWC}, 11")
    a(f"s_lshl_b32 s{sT1}, s{sWRr}, 9")
    a(f"s_add_u32 s{sT0}, s{sT0}, s{sT1}")
    a(f"v_lshlrev_b32 v{vT[0]}, 4, v{vL15}")
    a(f"v_lshl_add_u32 v{vT[0]}, v{vG}, 2, v{vT[0]}")
    a(f"v_add_u32 v{vT[0]}, s{sT0}, v{vT[0]}")
    a(f"ds_write_b32 v{vT[0]}, v{vStat[0]} offset:{K1_STAT}")
    a(f"ds_write_b32 v{vT[0]}, v{vStat[1]} offset:{K1_STAT+256}")
    for x in (vCG, vCU):
        a(f"v_mov_b32 v{vT[1]}, v{x}")
        a.nop(2)
        a(f"v_permlane32_swap_b32 v{x}, v{vT[1]}")
        a.nop(1)
        a(f"v_add_f32 v{x}, v{x}, v{vT[1]}")
        a(f"v_mov_b32 v{vT[1]}, v{x}")
        a.nop(2)
        a(f"v_permlane16_swap_b32 v{x}, v{vT[1]}")
        a.nop(1)
        a(f"v_add_f32 v{x}, v{x}, v{vT[1]}")
    a(f"s_lshl_b32 s{sT0}, s{sPI[0]}, 6")
    a(f"v_lshlrev_b32 v{vT[0]}, 2, v{vL15}")
    a(f"v_add_u32 v{vT[0]}, s{sT0}, v{vT[0]}")
    a(f"ds_write_b32 v{vT[0]}, v{vCG} offset:{K1_CS}")
    a(f"ds_write_b32 v{vT[0]}, v{vCU} offset:{K1_CS + 7*64}")
    a("s_waitcnt lgkmcnt(0)")
    a("s_barrier")
    vM = [V(), V()]; vR = [V(), V()]
    a(f"s_lshl_b32 s{sT1}, s{sWRr}, 9")
    a(f"v_lshlrev_b32 v{vT[0]}, 4, v{vL15}")
    a(f"v_add_u32 v{vT[0]}, s{sT1}, v{vT[0]}")
    for rb in range(2):
        a(f"ds_read_b128 v[{vU[2*rb]}:{vU[2*rb]+3}], v{vT[0]} offset:{K1_STAT + rb*256}")
        a(f"ds_read_b128 v[{vU[2*rb+1]}:{vU[2*rb+1]+3}], v{vT[0]} offset:{K1_STAT + 2048 + rb*256}")
    a(f"v_lshlrev_b32 v{vT[1]}, 4, v{vG}")
    for p in range(4):
        a(f"s_lshl_b32 s{sT0}, s{sPI[p]}, 6")
        a(f"v_add_u32 v{vT[2+p]}, s{sT0}, v{vT[1]}")
        a(f"ds_read_b128 v[{WF[2*p]}:{WF[2*p]+3}], v{vT[2+p]} offset:{K1_CS}")
        a(f"ds_read_b128 v[{WF[2*p+1]}:{WF[2*p+1]+3}], v{vT[2+p]} offset:{K1_CS + 7*64}")
    a("s_waitcnt lgkmcnt(8)")
    for rb in range(2):
        S = vU[2*rb]; Q = vU[2*rb+1]
        a(f"v_add_f32 v{S}, v{S}, v{S+1}")
        a(f"v_add_f32 v{S+2}, v{S+2}, v{S+3}")
        a(f"v_add_f32 v{Q}, v{Q}, v{Q+1}")
        a(f"v_add_f32 v{Q+2}, v{Q+2}, v{Q+3}")
        a(f"v_add_f32 v{S}, v{S}, v{S+2}")
        a(f"v_add_f32 v{Q}, v{Q}, v{Q+2}")
        a(f"v_mul_f32 v{S}, {hexf(1.0/512)}, v{S}")
        a(f"v_mul_f32 v{Q}, {hexf(1.0/512)}, v{Q}")
        a(f"v_fma_f32 v{Q}, -v{S}, v{S}, v{Q}")
        a(f"v_max_f32 v{Q}, 0, v{Q}")
        bf16_round(a, S, S+1)
        bf16_round(a, Q, Q+1)
        a(f"v_add_f32 v{Q}, {hexf(1e-5)}, v{Q}")
        bf16_round(a, Q, Q+1)
        a(f"v_sqrt_f32 v{Q}, v{Q}")
        a.nop(1)
        bf16_round(a, Q, Q+1)
        a(f"v_rcp_f32 v{vR[rb]}, v{Q}")
        a(f"v_mov_b32 v{vM[rb]}, v{S}")
    a("s_waitcnt lgkmcnt(0)")
    sH0 = sT3; sX0 = sT4
    a(f"s_and_b32 s{sT0}, s{sWRr}, 1")
    a(f"s_lshl_b32 s{sT0}, s{sT0}, 4")
    a(f"s_lshr_b32 s{sT1}, s{sA}, 1")
    a(f"s_add_u32 s{sT0}, s{sT0}, s{sT1}")
    a(f"s_mul_i32 s{sH0}, s{sT0}, {56*4096}")
    a(f"s_and_b32 s{sT0}, s{sA}, 1")
    a(f"s_lshl_b32 s{sT0}, s{sT0}, 1")
    a(f"s_lshr_b32 s{sT1}, s{sWRr}, 1")
    a(f"s_add_u32 s{sT0}, s{sT0}, s{sT1}")
    a(f"s_lshl_b32 s{sT0}, s{sT0}, 10")
    a(f"s_add_u32 s{sH0}, s{sH0}, s{sT0}")
    if H_OFF: a(f"s_add_u32 s{sH0}, s{sH0}, {H_OFF}")
    vC0 = V()
    a(f"v_mov_b32 v{vC0}, {hexf(-2*1.4426950408889634*0.7978845608028654)}")
    a(f"s_mov_b32 s{sC1}, {hexf(-2*1.4426950408889634*0.7978845608028654*0.044715)}")

    def geglu(p, last):
        a(f"s_mul_i32 s{sT0}, s{sCT}, 7")
        a(f"s_add_u32 s{sT0}, s{sT0}, s{sPI[p]}")
        a(f"s_and_b32 s{sT1}, s{sT0}, 1")
        a(f"s_lshl_b32 s{sT1}, s{sT1}, 3")
        a(f"s_lshr_b32 s{sT0}, s{sT0}, 1")
        a(f"s_lshl_b32 s{sT0}, s{sT0}, 12")
        a(f"s_add_u32 s{sT0}, s{sT0}, s{sT1}")
        a(f"s_add_u32 s{sT0}, s{sT0}, s{sH0}")
        for rb in range(2):
            G = ACC[2*p][rb]; U = ACC[2*p+1][rb]
            cg = WF[2*p]; cu = WF[2*p+1]
            t = vT
            for r in range(4):
                a(f"v_fma_f32 v{G+r}, -v{vM[rb]}, v{cg+r}, v{G+r}")
                a(f"v_fma_f32 v{U+r}, -v{vM[rb]}, v{cu+r}, v{U+r}")
            for r in range(4):
                a(f"v_mul_f32 v{G+r}, v{G+r}, v{vR[rb]}")
                a(f"v_mul_f32 v{U+r}, v{U+r}, v{vR[rb]}")
            for r in range(4):
                a(f"v_mul_f32 v{t[r]}, v{G+r}, v{G+r}")
            for r in range(4):
                a(f"v_fma_f32 v{t[r]}, v{t[r]}, s{sC1}, v{vC0}")
            for r in range(4):
                a(f"v_mul_f32 v{t[r]}, v{t[r]}, v{G+r}")
            for r in range(4):
                a(f"v_exp_f32 v{t[r]}, v{t[r]}")
            a.nop(1)
            for r in range(4):
                a(f"v_add_f32 v{t[r]}, 1.0, v{t[r]}")
            for r in range(4):
                a(f"v_rcp_f32 v{t[r]}, v{t[r]}")
            for r in range(4):
                a(f"v_mul_f32 v{G+r}, v{G+r}, v{U+r}")
            for r in range(4):
                a(f"v_mul_f32 v{G+r}, v{G+r}, v{t[r]}")
            o = vS[rb]
            a(f"v_cvt_pk_bf16_f32 v{o}, v{G}, v{G+1}")
            a(f"v_cvt_pk_bf16_f32 v{o+1}, v{G+2}, v{G+3}")
            a(f"buffer_store_dwordx2 v[{o}:{o+1}], v{vL16}, s[{sWS}:{sWS+3}], s{sT0} offen")
            if rb == 0:
                a(f"s_add_u32 s{sT0}, s{sT0}, {8*56*4096}")
    for p in range(3):
        geglu(p, False)
    a(f"s_cmp_eq_u32 s{sWC}, 0")
    a(f"s_cbranch_scc0 {P}EPF")
    geglu(3, True)
    a(f"s_branch {P}END")
    a.label(f"{P}EPF")
    a(f"s_lshl_b32 s{sT0}, s{sW}, 7")
    a(f"v_lshlrev_b32 v{vT[0]}, 2, v{vL15}")
    a(f"v_add_u32 v{vT[0]}, s{sT0}, v{vT[0]}")
    a(f"ds_write_b32 v{vT[0]}, v{vR[0]} offset:{K1_RR}")
    a(f"ds_write_b32 v{vT[0]}, v{vR[1]} offset:{K1_RR+64}")
    a(f"v_lshlrev_b32 v{vT[1]}, 4, v{vG}")
    a(f"v_add_u32 v{vT[1]}, s{sT0}, v{vT[1]}")
    a("s_waitcnt lgkmcnt(0)")
    a(f"ds_read_b128 v[{vU[0]}:{vU[0]+3}], v{vT[1]} offset:{K1_RR}")
    a(f"ds_read_b128 v[{vU[1]}:{vU[1]+3}], v{vT[1]} offset:{K1_RR+64}")
    a(f"v_lshlrev_b32 v{vT[2]}, 13, v{vL15}")
    a(f"v_lshl_add_u32 v{vT[2]}, v{vG}, 3, v{vT[2]}")
    a(f"s_lshl_b32 s{sX0}, s{sCT}, 17")
    a(f"s_lshl_b32 s{sT0}, s{sA}, 1")
    a(f"s_lshr_b32 s{sT1}, s{sWRr}, 1")
    a(f"s_add_u32 s{sT0}, s{sT0}, s{sT1}")
    a(f"s_lshl_b32 s{sT0}, s{sT0}, 7")
    a(f"s_add_u32 s{sX0}, s{sX0}, s{sT0}")
    a(f"s_and_b32 s{sT0}, s{sWRr}, 1")
    a(f"s_lshl_b32 s{sT0}, s{sT0}, 6")
    a(f"s_add_u32 s{sX0}, s{sX0}, s{sT0}")
    a(f"s_add_u32 s{sX0}, s{sX0}, {X1_OFF}")
    a("s_waitcnt lgkmcnt(0)")
    for blk in range(2):
        for rb in range(2):
            A = ACC[6+blk][rb]
            for r in range(4):
                a(f"v_mul_f32 v{A+r}, v{A+r}, v{vU[rb]+r}")
            o = vS[2 + (rb & 1)]
            a(f"v_cvt_pk_bf16_f32 v{o}, v{A}, v{A+1}")
            a(f"v_cvt_pk_bf16_f32 v{o+1}, v{A+2}, v{A+3}")
            a(f"s_add_u32 s{sT0}, s{sX0}, {blk*4096 + rb*32}")
            a(f"buffer_store_dwordx2 v[{o}:{o+1}], v{vT[2]}, s[{sWS}:{sWS+3}], s{sT0} offen")
    a.label(f"{P}END")
    a("s_endpgm")
    nv = V.next
    return a, nv


def fft_body(a, P, V, sWS, sW, sC, sT, ldsbase, ld_flags="", st_flags="", pre_wait=None):
    sT0, sT1, sT2, sT3 = sT[:4]
    vL, vL15, vG = V(), V(), V()
    vT = [V() for _ in range(16)]
    XR = [[V(4), V(4)], [V(4), V(4)]]
    XI = [[V(4), V(4)], [V(4), V(4)]]
    WTr = [V(4), V(4)]
    C1 = [V(4), V(4)]; S1 = [V(4), V(4)]; N1 = [V(4), V(4)]
    C3 = [V(4), V(4)]; S3 = [V(4), V(4)]; N3 = [V(4), V(4)]
    CT = [V(4), V(4)]; ST = [V(4), V(4)]
    AR = [V(4), V(4)]; AI = [V(4), V(4)]
    BR = [V(4), V(4)]; BI = [V(4), V(4)]
    PR = V(4); PI = V(4)
    a(f"v_and_b32 v{vL}, 63, v0")
    a(f"v_and_b32 v{vL15}, 15, v0")
    a(f"v_lshrrev_b32 v{vG}, 4, v{vL}")
    a(f"v_lshlrev_b32 v{vT[0]}, 7, v{vL15}")
    a(f"v_lshl_add_u32 v{vT[0]}, v{vG}, 4, v{vT[0]}")
    a(f"s_lshl_b32 s{sT0}, s{sC}, 13")
    a(f"s_add_u32 s{sT1}, s{sT0}, {X1_OFF}")
    a(f"s_add_u32 s{sT2}, s{sT0}, {X1_OFF+4096}")
    if pre_wait: pre_wait()
    for b in range(2):
        for t in range(2):
            a(f"buffer_load_dwordx4 v[{XR[b][t]}:{XR[b][t]+3}], v{vT[0]}, s[{sWS}:{sWS+3}], s{sT1} offen offset:{b*2048+t*64}{ld_flags}")
            a(f"buffer_load_dwordx4 v[{XI[b][t]}:{XI[b][t]+3}], v{vT[0]}, s[{sWS}:{sWS+3}], s{sT2} offen offset:{b*2048+t*64}{ld_flags}")
    a(f"v_lshlrev_b32 v{vT[1]}, 4, v{vL}")
    a(f"s_lshl_b32 s{sT3}, s{sW}, 11")
    a(f"s_add_u32 s{sT3}, s{sT3}, s{sT0}")
    a(f"s_add_u32 s{sT3}, s{sT3}, {WT_OFF}")
    for b in range(2):
        a(f"buffer_load_dwordx4 v[{WTr[b]}:{WTr[b]+3}], v{vT[1]}, s[{sWS}:{sWS+3}], s{sT3} offen offset:{b*1024}{ld_flags}")
    nloads_after = 0
    vIdx = V()
    a(f"s_lshl_b32 s{sT3}, s{sW}, 4")
    a(f"v_add_u32 v{vT[2]}, s{sT3}, v{vL15}")
    a(f"v_cvt_f32_u32 v{vIdx}, v{vT[2]}")
    vGf = V()
    a(f"v_cvt_f32_u32 v{vGf}, v{vG}")
    def trig_pack(angles, Cd, Sd, Nd):
        for j in range(8): a(f"v_cos_f32 v{vT[8+j]}, v{vT[j]}")
        for j in range(8): a(f"v_sin_f32 v{vT[j]}, v{vT[j]}")
        a.nop(1)
        for j in range(4): a(f"v_cvt_pk_bf16_f32 v{Cd+j}, v{vT[8+2*j]}, v{vT[8+2*j+1]}")
        for j in range(4): a(f"v_cvt_pk_bf16_f32 v{Sd+j}, v{vT[2*j]}, v{vT[2*j+1]}")
        for j in range(4): a(f"v_xor_b32 v{Nd+j}, 0x80008000, v{Sd+j}")
    vF = V()
    a(f"v_mul_f32 v{vF}, {hexf(1.0/64)}, v{vIdx}")
    for t in range(2):
        a(f"v_fma_f32 v{vT[0]}, v{vGf}, 8.0 , v{vGf}".replace("8.0 ", "4.0") if False else f"v_mul_f32 v{vT[0]}, {hexf(8.0)}, v{vGf}")
        if t: a(f"v_add_f32 v{vT[0]}, {hexf(32.0)}, v{vT[0]}")
        a(f"v_mul_f32 v{vT[0]}, v{vT[0]}, v{vF}")
        a(f"v_fract_f32 v{vT[0]}, v{vT[0]}")
        for j in range(1, 8): a(f"v_add_f32 v{vT[j]}, v{vT[j-1]}, v{vF}")
        trig_pack(None, C1[t], S1[t], N1[t])
    vL15f = V()
    a(f"v_cvt_f32_u32 v{vL15f}, v{vL15}")
    for b in range(2):
        if b == 0: a(f"v_mul_f32 v{vF}, {hexf(1.0/32)}, v{vL15f}")
        else:
            a(f"v_add_f32 v{vF}, {hexf(16.0)}, v{vL15f}")
            a(f"v_mul_f32 v{vF}, {hexf(1.0/32)}, v{vF}")
        a(f"v_mul_f32 v{vT[0]}, 4.0, v{vGf}")
        a(f"v_mul_f32 v{vT[0]}, v{vT[0]}, v{vF}")
        a(f"v_fract_f32 v{vT[0]}, v{vT[0]}")
        for j in range(1, 4): a(f"v_add_f32 v{vT[j]}, v{vT[j-1]}, v{vF}")
        a(f"v_mul_f32 v{vT[4]}, {hexf(16.0)}, v{vF}")
        a(f"v_add_f32 v{vT[4]}, v{vT[4]}, v{vT[0]}")
        a(f"v_fract_f32 v{vT[4]}, v{vT[4]}")
        for j in range(5, 8): a(f"v_add_f32 v{vT[j]}, v{vT[j-1]}, v{vF}")
        trig_pack(None, C3[b], S3[b], N3[b])
    a(f"v_mul_f32 v{vF}, {hexf(1.0/2048)}, v{vIdx}")
    a(f"s_cmp_eq_u32 s{sC}, 0")
    a(f"s_mov_b32 s{sT2}, {hexf(2.0**-10)}")
    a(f"s_cselect_b32 s{sT3}, s{sT2}, {hexf(2.0**-9.5)}")
    for b in range(2):
        a(f"v_mul_f32 v{vT[0]}, 4.0, v{vGf}")
        if b: a(f"v_add_f32 v{vT[0]}, {hexf(16.0)}, v{vT[0]}")
        a(f"v_mul_f32 v{vT[0]}, v{vT[0]}, v{vF}")
        for r in range(1, 4): a(f"v_add_f32 v{vT[r]}, v{vT[r-1]}, v{vF}")
        for r in range(4): a(f"v_cos_f32 v{CT[b]+r}, v{vT[r]}")
        for r in range(4): a(f"v_sin_f32 v{ST[b]+r}, v{vT[r]}")
        a.nop(1)
        for r in range(4): a(f"v_mul_f32 v{CT[b]+r}, s{sT3}, v{CT[b]+r}")
        for r in range(4): a(f"v_mul_f32 v{ST[b]+r}, s{sT3}, v{ST[b]+r}")
    return dict(vL=vL, vL15=vL15, vG=vG, vT=vT, XR=XR, XI=XI, WTr=WTr, C1=C1, S1=S1, N1=N1, C3=C3, S3=S3, N3=N3,
                CT=CT, ST=ST, AR=AR, AI=AI, BR=BR, BI=BI, PR=PR, PI=PI)

def R4(b): return f"v[{b}:{b+3}]"
def mfma(a, D, A, B, C=None):
    c = "0" if C is None else R4(C)
    a(f"v_mfma_f32_16x16x32_bf16 {R4(D)}, {R4(A)}, {R4(B)}, {c}")

def fft_compute(a, R, sWS, sW, sC, sT, ldsbase, vm_after, st_flags=""):
    sT0, sT1, sT2, sT3 = sT[:4]
    vL, vL15, vG, vT = R["vL"], R["vL15"], R["vG"], R["vT"]
    XR, XI, WTr = R["XR"], R["XI"], R["WTr"]
    C1, S1, N1, C3, S3, N3, CT, ST = (R[k] for k in ("C1", "S1", "N1", "C3", "S3", "N3", "CT", "ST"))
    AR, AI, BR, BI, PR, PI = (R[k] for k in ("AR", "AI", "BR", "BI", "PR", "PI"))
    a(f"s_waitcnt vmcnt({min(63, vm_after + 2)})")
    for b in range(2):
        mfma(a, AR[b], XR[b][0], C1[0]); mfma(a, AI[b], XI[b][0], C1[0])
    for b in range(2):
        mfma(a, AR[b], XR[b][1], C1[1], AR[b]); mfma(a, AI[b], XI[b][1], C1[1], AI[b])
    for t in range(2):
        for b in range(2):
            mfma(a, AR[b], XI[b][t], S1[t], AR[b]); mfma(a, AI[b], XR[b][t], N1[t], AI[b])
    a.nop(8)
    def cmul(dr, di, ar_, ai_, cr, ci, conj, tmp):
        for r in range(4):
            a(f"v_mul_f32 v{tmp[r]}, v{ar_+r}, v{cr+r}")
            a(f"v_mul_f32 v{tmp[4+r]}, v{ai_+r}, v{cr+r}")
        for r in range(4):
            sg = "" if conj else "-"
            a(f"v_fma_f32 v{dr+r}, {sg}v{ai_+r}, v{ci+r}, v{tmp[r]}") if False else None
        for r in range(4):
            if conj:
                a(f"v_fma_f32 v{tmp[r]}, v{ai_+r}, v{ci+r}, v{tmp[r]}")
                a(f"v_fma_f32 v{tmp[4+r]}, -v{ar_+r}, v{ci+r}, v{tmp[4+r]}")
            else:
                a(f"v_fma_f32 v{tmp[r]}, -v{ai_+r}, v{ci+r}, v{tmp[r]}")
                a(f"v_fma_f32 v{tmp[4+r]}, v{ar_+r}, v{ci+r}, v{tmp[4+r]}")
        a(f"v_cvt_pk_bf16_f32 v{dr}, v{tmp[0]}, v{tmp[1]}")
        a(f"v_cvt_pk_bf16_f32 v{dr+1}, v{tmp[2]}, v{tmp[3]}")
        a(f"v_cvt_pk_bf16_f32 v{di}, v{tmp[4]}, v{tmp[5]}")
        a(f"v_cvt_pk_bf16_f32 v{di+1}, v{tmp[6]}, v{tmp[7]}")
    for b in range(2):
        cmul(PR + 2*b, PI + 2*b, AR[b], AI[b], CT[b], ST[b], True, vT[8*b:8*b+8])
    a.nop(2)
    for b in range(2):
        mfma(a, BR[b], C3[b], PR); mfma(a, BI[b], C3[b], PI)
    for b in range(2):
        mfma(a, BR[b], S3[b], PI, BR[b]); mfma(a, BI[b], N3[b], PR, BI[b])
    a(f"s_waitcnt vmcnt({min(63, vm_after)})")
    for b in range(2):
        for r in range(4):
            a(f"v_lshlrev_b32 v{AR[b]+r}, 16, v{WTr[b]+r}")
            a(f"v_and_b32 v{AI[b]+r}, 0xffff0000, v{WTr[b]+r}")
    a.nop(2)
    for b in range(2):
        cmul(PR + 2*b, PI + 2*b, BR[b], BI[b], AR[b], AI[b], False, vT[8*b:8*b+8])
    a.nop(2)
    for b in range(2):
        mfma(a, BR[b], C3[b], PR); mfma(a, BI[b], C3[b], PI)
    for b in range(2):
        mfma(a, BR[b], N3[b], PI, BR[b]); mfma(a, BI[b], S3[b], PR, BI[b])
    a.nop(8)
    for b in range(2):
        cmul(AR[b], AI[b], BR[b], BI[b], CT[b], ST[b], False, vT[8*b:8*b+8])
    a(f"s_lshl_b32 s{sT0}, s{sW}, 10")
    a(f"v_lshlrev_b32 v{vT[0]}, 6, v{vL15}")
    a(f"v_lshl_add_u32 v{vT[0]}, v{vG}, 3, v{vT[0]}")
    a(f"v_add_u32 v{vT[0]}, s{sT0}, v{vT[0]}")
    for b in range(2):
        a(f"ds_write_b64 v{vT[0]}, v[{AR[b]}:{AR[b]+1}] offset:{ldsbase + 32*b}")
        a(f"ds_write_b64 v{vT[0]}, v[{AI[b]}:{AI[b]+1}] offset:{ldsbase + 4096 + 32*b}")
    a("s_waitcnt lgkmcnt(0)")
    a("s_barrier")
    a(f"v_lshrrev_b32 v{vT[1]}, 2, v{vL15}")
    a(f"v_lshl_add_u32 v{vT[1]}, v{vG}, 3, v{vT[1]}")
    a(f"v_lshlrev_b32 v{vT[1]}, 6, v{vT[1]}")
    a(f"v_and_b32 v{vT[2]}, 3, v{vL15}")
    a(f"v_lshl_add_u32 v{vT[1]}, v{vT[2]}, 3, v{vT[1]}")
    for pl, X in ((0, XR), (1, XI)):
        for b in range(2):
            for t in range(2):
                o = ldsbase + pl*4096 + t*2048 + 32*b
                a(f"ds_read_b64_tr_b16 v[{X[b][t]}:{X[b][t]+1}], v{vT[1]} offset:{o}")
                a(f"ds_read_b64_tr_b16 v[{X[b][t]+2}:{X[b][t]+3}], v{vT[1]} offset:{o+256}")
    a("s_waitcnt lgkmcnt(0)")
    for b in range(2):
        mfma(a, BR[b], C1[0], XR[b][0]); mfma(a, BI[b], C1[0], XI[b][0])
    for b in range(2):
        mfma(a, BR[b], C1[1], XR[b][1], BR[b]); mfma(a, BI[b], C1[1], XI[b][1], BI[b])
    for t in range(2):
        for b in range(2):
            mfma(a, BR[b], N1[t], XI[b][t], BR[b]); mfma(a, BI[b], S1[t], XR[b][t], BI[b])
    a.nop(8)
    a(f"v_lshlrev_b32 v{vT[0]}, 5, v{vL15}")
    a(f"v_lshl_add_u32 v{vT[0]}, v{vG}, 3, v{vT[0]}")
    a(f"s_lshl_b32 s{sT0}, s{sC}, 13")
    a(f"s_lshl_b32 s{sT1}, s{sW}, 10")
    a(f"s_add_u32 s{sT0}, s{sT0}, s{sT1}")
    a(f"s_add_u32 s{sT0}, s{sT0}, {YT_OFF}")
    a(f"s_add_u32 s{sT1}, s{sT0}, 4096")
    for b in range(2):
        a(f"v_cvt_pk_bf16_f32 v{PR+2*b}, v{BR[b]}, v{BR[b]+1}")
        a(f"v_cvt_pk_bf16_f32 v{PR+2*b+1}, v{BR[b]+2}, v{BR[b]+3}")
        a(f"v_cvt_pk_bf16_f32 v{PI+2*b}, v{BI[b]}, v{BI[b]+1}")
        a(f"v_cvt_pk_bf16_f32 v{PI+2*b+1}, v{BI[b]+2}, v{BI[b]+3}")
    for b in range(2):
        a(f"buffer_store_dwordx2 v[{PR+2*b}:{PR+2*b+1}], v{vT[0]}, s[{sWS}:{sWS+3}], s{sT0} offen offset:{b*512}{st_flags}")
        a(f"buffer_store_dwordx2 v[{PI+2*b}:{PI+2*b+1}], v{vT[0]}, s[{sWS}:{sWS+3}], s{sT1} offen offset:{b*512}{st_flags}")

def gen_k2(name):
    a = Asm(); header(a, name); P = "K2_"
    sWS = 4; sW = 8; sT = [9, 10, 11, 12]
    a("s_cmp_ge_u32 s2, 256")
    a(f"s_cbranch_scc1 {P}END")
    a(f"s_load_dwordx2 s[{sWS}:{sWS+1}], s[0:1], 72")
    a("v_lshrrev_b32 v1, 6, v0")
    srd(a, sWS, WS_USED)
    a(f"v_readfirstlane_b32 s{sW}, v1")
    a("s_waitcnt lgkmcnt(0)")
    V = Alloc(2, 256)
    R = fft_body(a, P, V, sWS, sW, 2, sT, 0)
    fft_compute(a, R, sWS, sW, 2, sT, 0, 0)
    a.label(f"{P}END")
    a("s_endpgm")
    return a, V.next

K3_Y = 0
K3_RED = 65536
K3_LDS = K3_RED + 49152

def gen_k3(name):
    a = Asm(); header(a, name); P = "K3_"
    sWS, sX, sO = 4, 8, 12
    sW, sTt, sCT2 = 16, 17, 18
    sHA, sWA = 19, 20
    sT = [21, 22, 23, 24, 25]
    sWY = 26
    sRot = [27, 28, 29, 30]
    a("s_cmp_ge_u32 s2, 256")
    a(f"s_cbranch_scc1 {P}END")
    a(f"s_load_dwordx2 s[{sWS}:{sWS+1}], s[0:1], 72")
    a(f"s_load_dwordx2 s[{sX}:{sX+1}], s[0:1], 0")
    a(f"s_load_dwordx2 s[{sO}:{sO+1}], s[0:1], 56")
    V = Alloc(1, 256)
    vL, vL15, vG, vL16 = V(), V(), V(), V()
    vT = [V() for _ in range(8)]
    vH = [V() for _ in range(4)]
    a(f"v_lshrrev_b32 v{vT[0]}, 6, v0")
    a(f"v_and_b32 v{vL}, 63, v0")
    a(f"v_and_b32 v{vL15}, 15, v0")
    a(f"v_readfirstlane_b32 s{sW}, v{vT[0]}")
    a(f"v_lshrrev_b32 v{vG}, 4, v{vL}")
    a(f"v_lshlrev_b32 v{vL16}, 4, v{vL}")
    srd(a, sWS, WS_USED); srd(a, sX, 2048*512*2); srd(a, sO, 2048*512*2)
    a(f"s_and_b32 s{sT[0]}, s2, 7")
    a(f"s_lshr_b32 s{sT[1]}, s2, 3")
    a(f"s_lshl_b32 s{sTt}, s{sT[0]}, 2")
    a(f"s_and_b32 s{sT[2]}, s{sT[1]}, 3")
    a(f"s_add_u32 s{sTt}, s{sTt}, s{sT[2]}")
    a(f"s_lshr_b32 s{sCT2}, s{sT[1]}, 2")
    for i in range(4):
        a(f"s_add_u32 s{sRot[i]}, s{sW}, {i}")
        a(f"s_and_b32 s{sRot[i]}, s{sRot[i]}, 3")
        a(f"s_lshl_b32 s{sT[0]}, s{sRot[i]}, 10")
        a(f"v_add_u32 v{vH[i]}, s{sT[0]}, v{vL16}")
    a(f"s_mul_i32 s{sT[0]}, s{sW}, 14")
    a(f"s_mul_i32 s{sHA}, s{sTt}, 56")
    a(f"s_add_u32 s{sHA}, s{sHA}, s{sT[0]}")
    a(f"s_lshl_b32 s{sHA}, s{sHA}, 12")
    if H_OFF: a(f"s_add_u32 s{sHA}, s{sHA}, {H_OFF}")
    a(f"s_mul_i32 s{sWA}, s{sCT2}, 72")
    a(f"s_add_u32 s{sT[3]}, s{sWA}, 56")
    a(f"s_add_u32 s{sWA}, s{sWA}, s{sT[0]}")
    a(f"s_lshl_b32 s{sWA}, s{sWA}, 12")
    a(f"s_add_u32 s{sWA}, s{sWA}, {W2_OFF}")
    a(f"s_lshl_b32 s{sT[0]}, s{sW}, 2")
    a(f"s_add_u32 s{sWY}, s{sT[3]}, s{sT[0]}")
    a(f"s_lshl_b32 s{sWY}, s{sWY}, 12")
    a(f"s_add_u32 s{sWY}, s{sWY}, {W2_OFF}")
    ACC = [[V(4) for i in range(4)] for cb in range(4)]
    D = 7
    def bufW(d, i): return d*32 + i*4
    def bufH(d, i): return d*32 + 16 + i*4
    def A4(b): return f"a[{b}:{b+3}]"
    def issue(d):
        for i in range(4):
            a(f"buffer_load_dwordx4 {A4(bufW(d,i))}, v{vL16}, s[{sWS}:{sWS+3}], s{sWA} offen offset:{i*1024}")
        for i in range(4):
            a(f"buffer_load_dwordx4 {A4(bufH(d,i))}, v{vH[i]}, s[{sWS}:{sWS+3}], s{sHA} offen")
        a(f"s_add_u32 s{sWA}, s{sWA}, 4096")
        a(f"s_add_u32 s{sHA}, s{sHA}, 4096")
    a("s_waitcnt lgkmcnt(0)")
    for d in range(D): issue(d)
    vO = V()
    a(f"s_lshr_b32 s{sT[0]}, s{sTt}, 3")
    a(f"s_lshl_b32 s{sT[0]}, s{sT[0]}, 19")
    a(f"s_and_b32 s{sT[1]}, s{sTt}, 7")
    a(f"s_lshl_b32 s{sT[1]}, s{sT[1]}, 2")
    a(f"s_add_u32 s{sT[1]}, s{sT[1]}, s{sW}")
    a(f"s_lshl_b32 s{sT[1]}, s{sT[1]}, 10")
    a(f"s_add_u32 s{sT[0]}, s{sT[0]}, s{sT[1]}")
    a(f"s_lshl_b32 s{sT[1]}, s{sCT2}, 7")
    a(f"s_add_u32 s{sT[0]}, s{sT[0]}, s{sT[1]}")
    a(f"v_lshlrev_b32 v{vO}, 15, v{vL15}")
    a(f"v_lshl_add_u32 v{vO}, v{vG}, 3, v{vO}")
    a(f"v_add_u32 v{vO}, s{sT[0]}, v{vO}")
    def compute(Wf, Hf, first):
        for cb in range(4):
            for i in range(4):
                c = "0" if first else R4(ACC[cb][i])
                a(f"v_mfma_f32_16x16x32_bf16 {R4(ACC[cb][i])}, {Wf(cb)}, {Hf(i)}, {c}")
    for s in range(14):
        d = s % D
        if s < 7:
            a(f"s_waitcnt vmcnt({6*8})")
        else:
            a(f"s_waitcnt vmcnt({(13-s)*8})")
        compute(lambda cb: A4(bufW(d, cb)), lambda i: A4(bufH(d, i)), s == 0)
        if s < 7: issue(d)
    YL = [V(4) for _ in range(16)]
    XRes = [V(2) for _ in range(4)]
    a(f"v_lshrrev_b32 v{vT[0]}, 3, v{vL}")
    a(f"v_lshlrev_b32 v{vT[0]}, 13, v{vT[0]}")
    a(f"v_and_b32 v{vT[1]}, 7, v{vL}")
    a(f"v_lshl_add_u32 v{vT[0]}, v{vT[1]}, 4, v{vT[0]}")
    a(f"s_lshl_b32 s{sT[0]}, s{sW}, 19")
    a(f"s_lshl_b32 s{sT[1]}, s{sTt}, 7")
    a(f"s_add_u32 s{sT[0]}, s{sT[0]}, s{sT[1]}")
    a(f"s_add_u32 s{sT[0]}, s{sT[0]}, {YT_OFF}")
    for v in range(4):
        for pl in range(2):
            for hh in range(2):
                a(f"s_add_u32 s{sT[1]}, s{sT[0]}, {(16*v+8*hh)*8192 + pl*4096}")
                a(f"buffer_load_dwordx4 {R4(YL[v*4+pl*2+hh])}, v{vT[0]}, s[{sWS}:{sWS+3}], s{sT[1]} offen")
    for v in range(4):
        for i in range(4):
            a(f"buffer_load_dwordx4 {A4(bufW(v,i))}, v{vL16}, s[{sWS}:{sWS+3}], s{sWY} offen offset:{i*1024}")
        a(f"s_add_u32 s{sWY}, s{sWY}, 4096")
    for cb in range(4):
        a(f"buffer_load_dwordx2 v[{XRes[cb]}:{XRes[cb]+1}], v{vO}, s[{sX}:{sX+3}], 0 offen offset:{cb*32}")
    a(f"v_lshrrev_b32 v{vT[2]}, 3, v{vL}")
    a(f"v_lshlrev_b32 v{vT[2]}, 7, v{vT[2]}")
    a(f"v_lshrrev_b32 v{vT[3]}, 1, v{vT[1]}")
    a(f"v_xor_b32 v{vT[3]}, v{vT[3]}, v{vG}")
    a(f"v_lshl_add_u32 v{vT[2]}, v{vT[3]}, 5, v{vT[2]}")
    a(f"v_and_b32 v{vT[3]}, 1, v{vT[1]}")
    a(f"v_lshl_add_u32 v{vT[2]}, v{vT[3]}, 4, v{vT[2]}")
    a(f"s_lshl_b32 s{sT[2]}, s{sW}, 14")
    a(f"v_add_u32 v{vT[2]}, s{sT[2]}, v{vT[2]}")
    for v in range(4):
        for pl in range(2):
            for hh in range(2):
                k = v*4 + pl*2 + hh
                a(f"s_waitcnt vmcnt({4 + 16 + 15 - k})")
                a(f"ds_write_b128 v{vT[2]}, {R4(YL[k])} offset:{K3_Y + v*4096 + pl*2048 + hh*1024}")
    vB = [V() for _ in range(4)]
    a(f"v_lshrrev_b32 v{vT[3]}, 2, v{vL15}")
    a(f"v_lshl_add_u32 v{vT[3]}, v{vG}, 2, v{vT[3]}")
    a(f"v_lshrrev_b32 v{vT[4]}, 1, v{vT[3]}")
    a(f"v_and_b32 v{vT[4]}, 3, v{vT[4]}")
    a(f"v_lshlrev_b32 v{vT[3]}, 7, v{vT[3]}")
    a(f"v_and_b32 v{vT[5]}, 3, v{vL15}")
    a(f"v_lshl_add_u32 v{vT[3]}, v{vT[5]}, 3, v{vT[3]}")
    a(f"v_add_u32 v{vT[3]}, s{sT[2]}, v{vT[3]}")
    for i in range(4):
        a(f"v_xor_b32 v{vT[5]}, s{sRot[i]}, v{vT[4]}")
        a(f"v_lshl_add_u32 v{vB[i]}, v{vT[5]}, 5, v{vT[3]}")
    a("s_waitcnt vmcnt(4) lgkmcnt(0)")
    YF = YL
    for v in range(4):
        for i in range(4):
            f = YF[v*4+i]
            a(f"ds_read_b64_tr_b16 v[{f}:{f+1}], v{vB[i]} offset:{K3_Y + v*4096}")
            a(f"ds_read_b64_tr_b16 v[{f+2}:{f+3}], v{vB[i]} offset:{K3_Y + v*4096 + 2048}")
    for v in range(4):
        a(f"s_waitcnt lgkmcnt({min(15, (3-v)*8)})")
        compute(lambda cb: A4(bufW(v, cb)), lambda i: R4(YF[v*4+i]), False)
    vRW = [V() for _ in range(3)]
    for sl in range(1, 4):
        a(f"s_mul_i32 s{sT[0]}, s{sRot[sl]}, 12288")
        a(f"s_add_u32 s{sT[0]}, s{sT[0]}, {K3_RED + (sl-1)*4096}")
        a(f"v_add_u32 v{vRW[sl-1]}, s{sT[0]}, v{vL16}")
    a.nop(4)
    for sl in range(1, 4):
        for cb in range(4):
            a(f"ds_write_b128 v{vRW[sl-1]}, {R4(ACC[cb][sl])} offset:{cb*1024}")
    a(f"s_mul_i32 s{sT[0]}, s{sW}, 12288")
    a(f"s_add_u32 s{sT[0]}, s{sT[0]}, {K3_RED}")
    a(f"v_add_u32 v{vT[0]}, s{sT[0]}, v{vL16}")
    a("s_waitcnt lgkmcnt(0)")
    a("s_barrier")
    for sl in range(3):
        for cb in range(4):
            a(f"ds_read_b128 {R4(YL[sl*4+cb])}, v{vT[0]} offset:{sl*4096 + cb*1024}")
    a("s_waitcnt vmcnt(0)")
    for sl in range(3):
        a(f"s_waitcnt lgkmcnt({(2-sl)*4})")
        for cb in range(4):
            for r in range(4):
                a(f"v_add_f32 v{ACC[cb][0]+r}, v{ACC[cb][0]+r}, v{YL[sl*4+cb]+r}")
    for cb in range(4):
        A = ACC[cb][0]; X = XRes[cb]
        a(f"v_lshlrev_b32 v{vT[1]}, 16, v{X}")
        a(f"v_and_b32 v{vT[2]}, 0xffff0000, v{X}")
        a(f"v_lshlrev_b32 v{vT[3]}, 16, v{X+1}")
        a(f"v_and_b32 v{vT[4]}, 0xffff0000, v{X+1}")
        for r in range(4):
            a(f"v_add_f32 v{A+r}, v{A+r}, v{vT[1+r]}")
        a(f"v_cvt_pk_bf16_f32 v{X}, v{A}, v{A+1}")
        a(f"v_cvt_pk_bf16_f32 v{X+1}, v{A+2}, v{A+3}")
        a(f"buffer_store_dwordx2 v[{X}:{X+1}], v{vO}, s[{sO}:{sO+3}], 0 offen offset:{cb*32}")
    a.label(f"{P}END")
    a("s_endpgm")
    return a, V.next

def build(variant="3k"):
    out = []
    hdr = f"""; Fused LayerNorm + GFNet spectral filter + GEGLU MLP, generated by a hand-written generator.
; @launch kernel=k1_kernel grid=(256,1,1) block=(512,1,1) lds={K1_LDS}
; @launch kernel=k2_kernel grid=(256,1,1) block=(256,1,1) lds=8192
; @launch kernel=k3_kernel grid=(256,1,1) block=(256,1,1) lds={K3_LDS}
.amdgcn_target "amdgcn-amd-amdhsa--gfx950"
.text
"""
    out.append(hdr)
    probs = []
    a1, n1 = gen_k1("k1_kernel"); probs += check_hazards(a1.lines, "k1")
    a2, n2 = gen_k2("k2_kernel"); probs += check_hazards(a2.lines, "k2")
    a3, n3 = gen_k3("k3_kernel"); probs += check_hazards(a3.lines, "k3")
    out.append(a1.text()); out.append(descriptor("k1_kernel", 256, 64, 256))
    out.append(a2.text()); out.append(descriptor("k2_kernel", (n2+7)//8*8, 32, (n2+3)//4*4))
    out.append(a3.text()); out.append(descriptor("k3_kernel", 512, 40, 256))
    for p in probs: print("HAZARD", p, file=sys.stderr)
    print(f"vgprs: k1 {n1} k2 {n2} k3 {n3}", file=sys.stderr)
    return "".join(out)

if __name__ == "__main__":
    path = sys.argv[1] if len(sys.argv) > 1 else f"cdna_kernels/{NAME}.s"
    open(path, "w").write(build())
```
